```python
import torch

def _softmax(x, axis=-1):
    return torch.softmax(x, dim=axis)
def _gelu(x):
    return torch.nn.functional.gelu(x, approximate="tanh")
def _silu(x):
    return torch.nn.functional.silu(x)
def _sigmoid(x):
    return torch.sigmoid(x)
def _layernorm(x, axis=-1, eps=1e-5):
    m = x.mean(dim=axis, keepdim=True)
    v = x.var(dim=axis, keepdim=True, unbiased=False)
    return (x - m) / torch.sqrt(v + eps)
def _scatter_add(tgt, idx, src, axis=0):
    return tgt.clone().index_add_(axis, idx, src)
def _segment_sum(src, seg, n):
    out = torch.zeros((n,) + src.shape[1:], dtype=src.dtype)
    return out.index_add_(0, seg, src)
def _pad(x, pw):
    flat = tuple(v for pair in reversed(pw) for v in pair)
    return torch.nn.functional.pad(x, flat)

kernel_name = 'gated_mix__ssm_conv_s4__dense_activation_relu__prompt'

def setup_inputs():

    _w = (lambda a: (lambda t: t.to(torch.bfloat16) if t.is_floating_point() else t)(torch.as_tensor(a)))
    def _A_setup():
        B, L, D, N = 1, 2048, 512, 128
        A_re = -(lambda _x: torch.exp(torch.as_tensor(_x)))((lambda *s: torch.randn(*s, dtype=torch.bfloat16) * 3.2)(D, N))
        A_im = torch.pi * (lambda *s: torch.randn(*s, dtype=torch.bfloat16) * 0.1)(D, N)
        B_re = (lambda *s: torch.randn(*s, dtype=torch.bfloat16) * 0.4)(D, N)
        B_im = (lambda *s: torch.randn(*s, dtype=torch.bfloat16) * 0.4)(D, N)
        C_re = (lambda *s: torch.randn(*s, dtype=torch.bfloat16) * 0.4)(D, N)
        C_im = (lambda *s: torch.randn(*s, dtype=torch.bfloat16) * 0.4)(D, N)
        log_dt = (lambda *s: torch.randn(*s, dtype=torch.bfloat16) * 0.1)(D) * 0.5 - 4.0
        Dskip = (lambda *s: torch.randn(*s, dtype=torch.bfloat16) * 0.2)(D)
        return {
            "u": _w((lambda *s: torch.randn(*s, dtype=torch.bfloat16) * 0.05)(B, L, D)),
            "A_re": _w(A_re),
            "A_im": _w(A_im),
            "B_re": _w(B_re),
            "B_im": _w(B_im),
            "C_re": _w(C_re),
            "C_im": _w(C_im),
            "log_dt": _w(log_dt),
            "Dskip": _w(Dskip),
        }
    _A_in = _A_setup()

    def _B_setup():
        B, S, D, Dff = 1, 2048, 512, 1376
        return {
            "x": _w((lambda *s: torch.randn(*s, dtype=torch.bfloat16) * 0.05)(B, S, D)),
            "w1": _w((lambda *s: torch.randn(*s, dtype=torch.bfloat16) * 0.05)(D, Dff)),
            "w2": _w((lambda *s: torch.randn(*s, dtype=torch.bfloat16) * 0.05)(Dff, D)),
        }
    _B_in = _B_setup()

    return {
        "A_u": _A_in["u"],
        "A_A_re": _A_in["A_re"],
        "A_A_im": _A_in["A_im"],
        "A_B_re": _A_in["B_re"],
        "A_B_im": _A_in["B_im"],
        "A_C_re": _A_in["C_re"],
        "A_C_im": _A_in["C_im"],
        "A_log_dt": _A_in["log_dt"],
        "A_Dskip": _A_in["Dskip"],
        "B_x": _B_in["x"],
        "B_w1": _B_in["w1"],
        "B_w2": _B_in["w2"],
        "gate_w": _w((lambda *s: torch.randn(*s, dtype=torch.bfloat16) * 0.05)(512) * 16.0),
    }

def reference(A_u, A_A_re, A_A_im, A_B_re, A_B_im, A_C_re, A_C_im, A_log_dt, A_Dskip, B_x, B_w1, B_w2, gate_w):
    def _A_ref(u, A_re, A_im, B_re, B_im, C_re, C_im, log_dt, Dskip):
        Bsz, L, D = u.shape
        dt = torch.exp(log_dt)[:, None]
        A = A_re + 1j * A_im
        Bc = B_re + 1j * B_im
        Cc = C_re + 1j * C_im
        logdA = dt * A
        dB = dt * Bc
        l = (lambda x, dt: x.to(dt))(torch.arange(L), A_re.dtype)
        P = torch.exp(logdA[:, :, None] * l[None, None, :])
        K = torch.einsum("dn,dnl,dn->dl", Cc, P, dB).real
        L2 = 2 * L
        Kp = _pad(K, ((0, 0), (0, L)))
        up = (lambda x, *d: x.permute(*d))(u, 0, 2, 1)
        up = _pad(up, ((0, 0), (0, 0), (0, L)))
        Kf = (lambda x, axes=(-2,-1): torch.fft.rfft2(x.float(), dim=axes))(Kp[:, None, :], axes=(-2, -1))
        Uf = (lambda x, axes=(-2,-1): torch.fft.rfft2(x.float(), dim=axes))(up[:, :, None, :], axes=(-2, -1))
        Yf = Uf * Kf[None, :, :, :]
        y = (lambda x, s, axes=(-2,-1): torch.fft.irfft2(x, s=s, dim=axes).to(torch.bfloat16))(Yf, (1, L2), axes=(-2, -1))[:, :, 0, :L]
        y = (lambda x, *d: x.permute(*d))(y, 0, 2, 1) + u * Dskip[None, None, :]
        return y

    def _B_ref(x, w1, w2):
        h = torch.einsum("bsd,df->bsf", x, w1)
        zero = torch.zeros_like(h)
        h = torch.maximum(h, zero)
        return torch.einsum("bsf,fd->bsd", h, w2)

    x = A_u
    g = _sigmoid((x * gate_w).sum(-1, keepdims=True))
    a = _A_ref(x, A_A_re, A_A_im, A_B_re, A_B_im, A_C_re, A_C_im, A_log_dt, A_Dskip)
    b = _B_ref(x, B_w1, B_w2)
    return g * a + (1 - g) * b
```

```python
class Asm:
    def __init__(self):
        self.lines = []
        self.vm = []
        self.nlabel = 0
    def __call__(self, s):
        for ln in s.strip("\n").split("\n"):
            ln = ln.strip()
            if ln:
                self.lines.append(("" if ln.endswith(":") else "    ") + ln)
    def label(self, base="L"):
        self.nlabel += 1
        return f"{base}_{self.nlabel}"
    def vmem(self, s, tag):
        self(s)
        self.vm.append(tag)
    def wait_vm(self, pred, extra=""):
        f = pred if callable(pred) else (lambda t: t == pred)
        idx = [i for i, t in enumerate(self.vm) if f(t)]
        if not idx:
            return
        last = idx[-1]
        n = len(self.vm) - 1 - last
        assert n <= 63, n
        self(f"s_waitcnt vmcnt({n}){extra}")
        self.vm = self.vm[last + 1:]
    def wait_vm_all(self):
        self("s_waitcnt vmcnt(0)")
        self.vm = []
    def text(self):
        return "\n".join(self.lines) + "\n"

def vr(a, n=1):
    return f"v{a}" if n == 1 else f"v[{a}:{a+n-1}]"
def sr(a, n=1):
    return f"s{a}" if n == 1 else f"s[{a}:{a+n-1}]"

def srd(A, s, base_lo, base_hi, off=None, nrec=None):
    if off is None:
        A(f"s_mov_b32 s{s}, {base_lo}\ns_mov_b32 s{s+1}, {base_hi}")
    else:
        A(f"s_add_u32 s{s}, {base_lo}, {off}\ns_addc_u32 s{s+1}, {base_hi}, 0")
    A(f"s_mov_b32 s{s+2}, {nrec}\ns_mov_b32 s{s+3}, 0x20000")

def kernel_header(name):
    return f"""
.text
.globl {name}
.p2align 8
.type {name},@function
{name}:
"""
def kernel_desc(name, vgpr=256, sgpr=96):
    return f"""
.section .rodata,"a"
.p2align 6
.amdhsa_kernel {name}
  .amdhsa_next_free_vgpr {vgpr}
  .amdhsa_next_free_sgpr {sgpr}
  .amdhsa_accum_offset {vgpr}
  .amdhsa_group_segment_fixed_size 0
  .amdhsa_kernarg_size 128
  .amdhsa_user_sgpr_count 2
  .amdhsa_user_sgpr_kernarg_segment_ptr 1
  .amdhsa_system_sgpr_workgroup_id_x 1
.end_amdhsa_kernel
"""
```

```python
from dsl import *

H_OFF, UT_OFF, AP_OFF, G_OFF, FL_OFF = 0, 0x600000, 0x800000, 0xA00000, 0xA10000
FU_OFF, FH_OFF, FA_OFF = 0xA40000, 0xA80000, 0xAC0000
SPIN = 20000

sW1, sW2, sGW, sOUT, sX, sWS = 4, 6, 8, 10, 12, 14
SRD_X, SRD_W1, SRD_GW, SRD_H, SRD_W2, SRD_H0, SRD_AP, SRD_OUT, SRD_F = 16, 20, 24, 28, 32, 36, 40, 44, 48
sWAVE, sRB, sCB, sLB, sDB, sP = 52, 53, 54, 55, 56, 57
sT0, sT1, sT2, sT3 = 58, 59, 60, 61
sTOK, sE = 62, 63
sM0 = 64

def ffn_prologue(A, cfg):
    A(f"""
s_load_dwordx2 s[{sX}:{sX+1}], s[0:1], 0
s_load_dwordx8 s[{sW1}:{sW1+7}], s[0:1], 80
s_load_dwordx2 s[{sWS}:{sWS+1}], s[0:1], 120
v_lshrrev_b32 v1, 6, v0
v_and_b32 v0, 63, v0
s_and_b32 s{sT0}, s2, 7
s_lshr_b32 s{sT1}, s2, 3
v_readfirstlane_b32 s{sWAVE}, v1
""")
    if cfg.get("map", "A") == "A":
        A(f"""
s_lshr_b32 s{sRB}, s{sT0}, 1
s_lshl_b32 s{sRB}, s{sRB}, 2
s_and_b32 s{sT2}, s{sT1}, 3
s_add_u32 s{sRB}, s{sRB}, s{sT2}
s_and_b32 s{sCB}, s{sT0}, 1
s_lshl_b32 s{sCB}, s{sCB}, 3
s_lshr_b32 s{sT2}, s{sT1}, 2
s_add_u32 s{sCB}, s{sCB}, s{sT2}
""")
    else:
        A(f"""
s_lshl_b32 s{sRB}, s{sT0}, 1
s_and_b32 s{sT2}, s{sT1}, 1
s_add_u32 s{sRB}, s{sRB}, s{sT2}
s_lshr_b32 s{sCB}, s{sT1}, 1
""")
    A(f"""
s_and_b32 s{sT2}, s{sCB}, 1
s_lshl_b32 s{sLB}, s{sRB}, 1
s_add_u32 s{sLB}, s{sLB}, s{sT2}
s_lshr_b32 s{sDB}, s{sCB}, 1
s_lshl_b32 s{sT2}, s{sCB}, 1
s_mul_i32 s{sT3}, s{sCB}, 3
s_sub_i32 s{sT3}, s{sT3}, 5
s_max_i32 s{sP}, s{sT2}, s{sT3}
""")

G1_X = 0 + 4
def g1(A, cfg):
    single = cfg["mode"] == "single"
    vX0, vX1, vW0, vL16, vAe0, vAo0, vAe1, vAo1, vGr = 1, 2, 3, 6, 7, 8, 9, 10, 11
    X = 12
    ACC = 140
    AB = 188
    GF = 236
    GA = 244
    GWL, GBUF = 73728, 74752
    xr = lambda p, s, t: X + ((p * 2 + s) * 2 + t) * 4
    acc = lambda t, ft: ACC + (t * 6 + ft) * 4
    ab = lambda b, ft: AB + b * 24 + ft * 4
    A(f"""
v_and_b32 v12, 15, v0
v_lshrrev_b32 v13, 4, v0
s_lshl_b32 s{sT0}, s{sWAVE}, 5
v_add_u32 v14, s{sT0}, v12
v_lshlrev_b32 v14, 10, v14
v_lshl_add_u32 v{vX0}, v13, 4, v14
v_add_u32 v{vX1}, 0x4000, v{vX0}
v_lshlrev_b32 v{vL16}, 4, v0
s_mul_i32 s{sT0}, s{sWAVE}, 192
""")
    for i in range(3):
        A(f"""
v_add_u32 v14, s{sT0}, v0
v_add_u32 v14, {64*i}, v14
v_mul_u32_u24 v15, 0xaaab, v14
v_lshrrev_b32 v15, 19, v15
v_mul_u32_u24 v16, 12, v15
v_sub_u32 v16, v14, v16
v_lshrrev_b32 v17, 3, v15
v_and_b32 v17, 1, v17
v_lshlrev_b32 v17, 1, v17
v_xor_b32 v16, v16, v17
v_lshlrev_b32 v16, 4, v16
v_mul_u32_u24 v15, 2752, v15
v_add_u32 v{vW0+i}, v15, v16
""")
    A(f"""
s_waitcnt lgkmcnt(0)
s_lshl_b32 s{sT0}, s{sRB}, 17
""")
    srd(A, SRD_X, f"s{sX}", f"s{sX+1}", f"s{sT0}", "0x20000")
    A(f"s_lshl_b32 s{sT0}, s{sP}, 6")
    srd(A, SRD_W1, f"s{sW1}", f"s{sW1+1}", f"s{sT0}", "0")
    A(f"s_sub_u32 s{SRD_W1+2}, {512*2752}, s{sT0}")
    srd(A, SRD_GW, f"s{sGW}", f"s{sGW+1}", None, "1024")
    A(f"s_mul_i32 s{sM0}, s{sWAVE}, 3072")
    A(f"s_mov_b32 m0, {GWL}\ns_mov_b32 s{sT0}, 0")
    A.vmem(f"buffer_load_dwordx4 v{vL16}, s[{SRD_GW}:{SRD_GW+3}], 0 offen lds", "gw")
    def issue_x(p):
        A(f"s_mov_b32 s{sT0}, {p*128}")
        for s in range(2):
            for t in range(2):
                r = xr(p, s, t)
                A.vmem(f"buffer_load_dwordx4 v[{r}:{r+3}], v{vX0+t}, s[{SRD_X}:{SRD_X+3}], s{sT0} offen offset:{s*64}", ("x", p))
    def issue_w(p):
        slot = p % 6
        A(f"s_mov_b32 s{sT1}, {p*64*2752}")
        for i in range(3):
            A(f"s_add_u32 m0, s{sM0}, {slot*12288 + i*1024}\ns_nop 0")
            A.vmem(f"buffer_load_dwordx4 v{vW0+i}, s[{SRD_W1}:{SRD_W1+3}], s{sT1} offen lds", ("w", p))
    for p in range(6):
        issue_x(p)
        issue_w(p)
    issue_x(6)
    issue_x(7)
    A(f"""
v_lshrrev_b32 v236, 4, v0
v_bfe_u32 v237, v0, 2, 2
v_lshl_add_u32 v237, v236, 3, v237
v_mul_u32_u24 v237, 192, v237
v_and_b32 v238, 3, v0
v_lshl_add_u32 v237, v238, 3, v237
v_and_b32 v238, 1, v236
v_lshlrev_b32 v238, 5, v238
v_add_u32 v{vAe0}, v237, v238
v_sub_u32 v{vAo0}, v237, v238
v_add_u32 v{vAe1}, {3*12288}, v{vAe0}
v_add_u32 v{vAo1}, {3*12288}, v{vAo0}
v_lshlrev_b32 v{vGr}, 4, v236
v_add_u32 v{vGr}, {GWL}, v{vGr}
""")
    A(f"""
s_lshr_b32 s{sT2}, s{sWAVE}, 1
s_and_b32 s{sT3}, s{sCB}, 1
s_xor_b32 s65, s{sT2}, s{sT3}
""")
    def reads(p, s):
        out = []
        slot = p % 6
        hi = slot >= 3
        for ft in range(6):
            va = (vAe1 if hi else vAe0) if ft % 2 == 0 else (vAo1 if hi else vAo0)
            for h in range(2):
                off = (slot % 3) * 12288 + s * 32 * 192 + h * 4 * 192 + ft * 32
                r = ab(s, ft) + 2 * h
                out.append(f"ds_read_b64_tr_b16 v[{r}:{r+1}], v{va} offset:{off}")
        g = GF + 4 * s
        out.append(f"ds_read_b128 v[{g}:{g+3}], v{vGr} offset:{p*128 + s*64}")
        return out
    def step(p, s, nxt):
        A("s_waitcnt lgkmcnt(0)")
        first = (p == 0 and s == 0)
        mf = []
        for ft in range(6):
            for t in range(2):
                c = "0" if first else f"v[{acc(t,ft)}:{acc(t,ft)+3}]"
                mf.append(f"v_mfma_f32_16x16x32_bf16 v[{acc(t,ft)}:{acc(t,ft)+3}], v[{ab(s,ft)}:{ab(s,ft)+3}], v[{xr(p,s,t)}:{xr(p,s,t)+3}], {c}")
        nxt = list(nxt)
        for m in mf:
            A(m)
            for _ in range(2):
                if nxt:
                    A(nxt.pop(0))
        assert not nxt
        lab = A.label("G1g")
        A(f"s_cmp_lg_u32 s65, 0\ns_cbranch_scc1 {lab}")
        for t in range(2):
            c = "0" if first else f"v[{GA+4*t}:{GA+4*t+3}]"
            A(f"v_mfma_f32_16x16x32_bf16 v[{GA+4*t}:{GA+4*t+3}], v[{GF+4*s}:{GF+4*s+3}], v[{xr(p,s,t)}:{xr(p,s,t)+3}], {c}")
        A(f"{lab}:")
    A.wait_vm(lambda t: t in (("x", 0), ("w", 0), "gw"))
    A("s_barrier")
    for r in reads(0, 0):
        A(r)
    for p in range(8):
        step(p, 0, reads(p, 1))
        if p < 7:
            A.wait_vm(lambda t: t in (("x", p + 1), ("w", p + 1)))
            A("s_barrier")
            if 1 <= p <= 2:
                issue_w(p + 5)
            step(p, 1, reads(p + 1, 0))
        else:
            step(p, 1, [])
    A(f"""
s_lshl_b32 s{sT0}, s{sRB}, 3
s_lshl_b32 s{sT1}, s{sWAVE}, 1
s_add_u32 s{sT0}, s{sT0}, s{sT1}
s_mul_i32 s{sT0}, s{sT0}, 43
s_add_u32 s{sT0}, s{sT0}, s{sP}
s_lshl_b32 s{sT0}, s{sT0}, 10
""")
    srd(A, SRD_H, f"s{sWS}", f"s{sWS+1}", None, f"{128*43*1024}")
    sc = " sc1" if single else ""
    A("s_nop 4")
    HB = AB
    for p in range(3):
        for t in range(2):
            d = HB + (p * 2 + t) * 4
            a0, a1 = acc(t, 2 * p), acc(t, 2 * p + 1)
            A(f"""
v_cvt_pk_bf16_f32 v{d}, v{a0}, v{a0+1}
v_cvt_pk_bf16_f32 v{d+1}, v{a0+2}, v{a0+3}
v_cvt_pk_bf16_f32 v{d+2}, v{a1}, v{a1+1}
v_cvt_pk_bf16_f32 v{d+3}, v{a1+2}, v{a1+3}
v_pk_max_i16 v{d}, v{d}, 0
v_pk_max_i16 v{d+1}, v{d+1}, 0
v_pk_max_i16 v{d+2}, v{d+2}, 0
v_pk_max_i16 v{d+3}, v{d+3}, 0
""")
        lab = None
        if p == 2:
            lab = A.label("G1s")
            A(f"s_cmp_lt_u32 s{sCB}, 5\ns_cbranch_scc1 {lab}")
        for t in range(2):
            d = HB + (p * 2 + t) * 4
            A(f"s_add_u32 s{sT1}, s{sT0}, {(t*43 + p)*1024}")
            st = f"buffer_store_dwordx4 v[{d}:{d+3}], v{vL16}, s[{SRD_H}:{SRD_H+3}], s{sT1} offen{sc}"
            if p == 2:
                A(st)
            else:
                A.vmem(st, "hst")
        if lab:
            A(f"{lab}:")
    lab = A.label("G1gate")
    A(f"""
s_cmp_lg_u32 s65, 0
s_cbranch_scc1 {lab}
v_cvt_pk_bf16_f32 v{GF}, v{GA}, v{GA+4}
v_lshlrev_b32 v{GF+1}, 16, v{GF}
v_and_b32 v{GF+2}, 0xffff0000, v{GF}
v_mul_f32 v{GF+1}, 0xbfb8aa3b, v{GF+1}
v_mul_f32 v{GF+2}, 0xbfb8aa3b, v{GF+2}
v_exp_f32 v{GF+1}, v{GF+1}
v_exp_f32 v{GF+2}, v{GF+2}
s_nop 0
v_add_f32 v{GF+1}, 1.0, v{GF+1}
v_add_f32 v{GF+2}, 1.0, v{GF+2}
v_rcp_f32 v{GF+1}, v{GF+1}
v_rcp_f32 v{GF+2}, v{GF+2}
s_nop 0
v_cvt_pk_bf16_f32 v{GF}, v{GF+1}, v{GF+2}
v_lshlrev_b32 v{GF+1}, 16, v{GF}
v_and_b32 v{GF+2}, 0xffff0000, v{GF}
s_and_b32 s{sT1}, s{sWAVE}, 1
s_lshl_b32 s{sT1}, s{sT1}, 7
v_and_b32 v{GF+3}, 15, v0
v_lshlrev_b32 v{GF+3}, 2, v{GF+3}
v_add_u32 v{GF+3}, s{sT1}, v{GF+3}
""")
    if single:
        A(f"""
v_add_u32 v{GF+3}, {GBUF}, v{GF+3}
ds_write_b32 v{GF+3}, v{GF+1}
ds_write_b32 v{GF+3}, v{GF+2} offset:64
""")
    else:
        srd(A, SRD_F, f"s{sWS}", f"s{sWS+1}", G_OFF, "8192")
        A(f"""
s_lshl_b32 s{sT1}, s{sLB}, 8
buffer_store_dword v{GF+1}, v{GF+3}, s[{SRD_F}:{SRD_F+3}], s{sT1} offen
buffer_store_dword v{GF+2}, v{GF+3}, s[{SRD_F}:{SRD_F+3}], s{sT1} offen offset:64
""")
    A(f"{lab}:")

def poll(A, srd_s, voff_reg, nlanes, soff, tmp, tokreg, name):
    A.wait_vm(name)
    top, done = A.label("POLL"), A.label("POLLD")
    mask = (1 << nlanes) - 1
    A(f"s_mov_b32 s{sT2}, {SPIN}")
    A(f"{top}:")
    A(f"v_cmp_ne_u32 vcc, s{tokreg}, v{tmp}")
    A(f"""
s_cbranch_vccz {done}
s_sub_u32 s{sT2}, s{sT2}, 1
s_cmp_eq_u32 s{sT2}, 0
s_cbranch_scc1 {done}
buffer_load_dword v{tmp}, v{voff_reg}, s[{srd_s}:{srd_s+3}], s{soff} offen sc1
s_waitcnt vmcnt(0)
s_branch {top}
{done}:
""")

def g2(A, cfg):
    single = cfg["mode"] == "single"
    FS = cfg.get("fstride", 4)
    vL16, vWo, vT, vG, vPo, vPt = 6, 1, 2, 7, 8, 9
    vAo = 10
    ACC = 12
    AR = 76
    HR = 172
    acc = lambda t, dt: ACC + (t * 4 + dt) * 4
    ar = lambda i, dt: AR + i * 16 + dt * 4
    hr = lambda i, t: HR + (i % 5) * 16 + t * 4
    sKS, sWB, sSO = 66, 67, 68
    GBUF = 74752
    if single:
        A("s_waitcnt lgkmcnt(0)\ns_barrier")
        A(f"""
v_and_b32 v{vPt}, 15, v0
s_lshl_b32 s{sT0}, s{sWAVE}, 6
v_lshl_add_u32 v{vPt}, v{vPt}, 2, s{sT0}
ds_read_b32 v{vG}, v{vPt} offset:{GBUF}
s_waitcnt lgkmcnt(0)
s_barrier
""")
    A(f"""
v_lshlrev_b32 v{vL16}, 4, v0
v_lshrrev_b32 v12, 3, v0
v_lshlrev_b32 v12, 10, v12
v_lshrrev_b32 v13, 4, v0
v_bfe_u32 v14, v0, 1, 2
v_xor_b32 v14, v14, v13
v_and_b32 v15, 1, v0
v_lshlrev_b32 v14, 5, v14
v_lshl_add_u32 v14, v15, 4, v14
v_add_u32 v{vWo}, v12, v14
s_mul_i32 s{sKS}, s{sWAVE}, 11
s_cmp_eq_u32 s{sWAVE}, 3
s_cselect_b32 s{sKS}, 32, s{sKS}
s_mul_i32 s{sWB}, s{sWAVE}, 20480
s_lshl_b32 s{sT0}, s{sDB}, 7
""")
    srd(A, SRD_W2, f"s{sW2}", f"s{sW2+1}", f"s{sT0}", "0")
    A(f"s_sub_u32 s{SRD_W2+2}, {1376*1024}, s{sT0}")
    def issue_w2(k, slot):
        for j in range(4):
            A(f"""
s_add_u32 s{sSO}, s{sKS}, {k}
s_lshl_b32 s{sSO}, s{sSO}, 15
s_add_u32 s{sSO}, s{sSO}, {j*8192}
s_add_u32 m0, s{sWB}, {slot*4096 + j*1024}
s_nop 0
""") if j == 0 else A(f"""
s_add_u32 s{sSO}, s{sSO}, 8192
s_add_u32 m0, s{sWB}, {slot*4096 + j*1024}
s_nop 0
""")
            A.vmem(f"buffer_load_dwordx4 v{vWo}, s[{SRD_W2}:{SRD_W2+3}], s{sSO} offen lds", ("w2", k))
    for k in range(5):
        issue_w2(k, k)
    if single:
        A.wait_vm("hst")
        A("s_barrier")
        lab = A.label("HFLAG")
        A(f"""
s_cmp_lg_u32 s{sWAVE}, 0
s_cbranch_scc1 {lab}
s_lshl_b32 s{sT0}, s{sRB}, 4
s_add_u32 s{sT0}, s{sT0}, s{sCB}
s_mul_i32 s{sT0}, s{sT0}, {FS}
s_add_u32 s{sT0}, s{sT0}, {FH_OFF - FL_OFF}
v_mov_b32 v12, s{sTOK}
v_mov_b32 v13, 0
s_mov_b64 exec, 1
buffer_store_dword v12, v13, s[{SRD_F}:{SRD_F+3}], s{sT0} offen sc1
s_mov_b64 exec, -1
{lab}:
""")
    A(f"""
v_lshrrev_b32 v12, 4, v0
v_bfe_u32 v13, v0, 2, 2
v_lshl_add_u32 v14, v12, 2, v13
v_lshlrev_b32 v15, 7, v14
v_bfe_u32 v14, v14, 1, 2
v_lshl_add_u32 v15, v14, 5, v15
v_and_b32 v14, 3, v0
v_lshl_add_u32 v15, v14, 3, v15
v_add_u32 v{vT}, s{sWB}, v15
v_xor_b32 v{vT+1}, 32, v{vT}
v_xor_b32 v{vT+2}, 64, v{vT}
v_xor_b32 v{vT+3}, 0x60, v{vT}
""")
    def trreads(dsti, slot):
        out = []
        for dt in range(4):
            for h in range(2):
                r = ar(dsti, dt) + 2 * h
                out.append(f"ds_read_b64_tr_b16 v[{r}:{r+1}], v{vT+dt} offset:{slot*4096 + h*2048}")
        return out
    slot_of = {0: 0, 1: 1, 2: 2, 3: 3, 4: 4, 5: 0, 6: 1, 7: 2, 8: 3, 9: 4, 10: 0}
    for k in range(6):
        A.wait_vm(("w2", k))
        for r in trreads(k, slot_of[k]):
            A(r)
        A("s_waitcnt lgkmcnt(0)")
        issue_w2(k + 5, slot_of[k + 5])
        if single and k == cfg.get("hpoll_k", 3):
            A(f"""
v_and_b32 v{vPo}, 15, v0
v_mul_u32_u24 v{vPo}, {FS}, v{vPo}
s_mul_i32 s{sT1}, s{sRB}, {16*FS}
s_add_u32 s{sT1}, s{sT1}, {FH_OFF - FL_OFF}
""")
            A.vmem(f"buffer_load_dword v{vPt}, v{vPo}, s[{SRD_F}:{SRD_F+3}], s{sT1} offen sc1", "hpoll")
    srd(A, SRD_H, f"s{sWS}", f"s{sWS+1}", None, f"{128*43*1024}")
    srd(A, SRD_H0, f"s{sWS}", f"s{sWS+1}", None, f"{128*43*1024}")
    A(f"""
s_cmp_eq_u32 s{sWAVE}, 3
s_cselect_b32 s{SRD_H0+2}, 0, s{SRD_H0+2}
s_lshl_b32 s69, s{sLB}, 2
s_mul_i32 s69, s69, 43
s_add_u32 s69, s69, s{sKS}
s_lshl_b32 s69, s69, 10
""")
    if single:
        poll(A, SRD_F, vPo, 16, sT1, vPt, sTOK, "hpoll")
    sc = " sc1" if single else ""
    def issue_h(k):
        s = SRD_H0 if k == 0 else SRD_H
        for t in range(4):
            A(f"s_add_u32 s{sSO}, s69, {(t*43 + k)*1024}")
            r = hr(k, t)
            A.vmem(f"buffer_load_dwordx4 v[{r}:{r+3}], v{vL16}, s[{s}:{s+3}], s{sSO} offen{sc}", ("h", k))
    for k in range(5):
        issue_h(k)
    srd(A, SRD_AP, f"s{sWS}", f"s{sWS+1}", AP_OFF, "0x200000")
    A(f"""
v_lshrrev_b32 v12, 4, v0
v_and_b32 v13, 15, v0
v_lshlrev_b32 v14, 14, v12
v_lshl_add_u32 v{vAo}, v13, 2, v14
s_lshl_b32 s70, s{sDB}, 18
s_lshl_b32 s{sT0}, s{sLB}, 8
s_add_u32 s70, s70, s{sT0}
s_lshl_b32 s{sT0}, s{sWAVE}, 6
s_add_u32 s70, s70, s{sT0}
""")
    if not single:
        srd(A, SRD_F, f"s{sWS}", f"s{sWS+1}", G_OFF, "8192")
        A(f"""
v_lshlrev_b32 v13, 2, v13
s_lshl_b32 s{sT0}, s{sLB}, 8
s_lshl_b32 s{sT1}, s{sWAVE}, 6
s_add_u32 s{sT0}, s{sT0}, s{sT1}
""")
        A.vmem(f"buffer_load_dword v{vG}, v13, s[{SRD_F}:{SRD_F+3}], s{sT0} offen", "g")
    AV = HR
    areg = {}
    for k in range(11):
        if k >= 6:
            ai = (k - 6)
        else:
            ai = k
        A.wait_vm(("h", k))
        A("s_waitcnt lgkmcnt(0)")
        nxt = []
        if 6 <= k + 1 <= 10:
            A.wait_vm(("w2", k + 1))
            nxt = trreads(k + 1 - 6, slot_of[k + 1])
        for t in range(4):
            for dt in range(4):
                c = "0" if k == 0 else f"v[{acc(t,dt)}:{acc(t,dt)+3}]"
                A(f"v_mfma_f32_16x16x32_bf16 v[{acc(t,dt)}:{acc(t,dt)+3}], v[{ar(ai,dt)}:{ar(ai,dt)+3}], v[{hr(k,t)}:{hr(k,t)+3}], {c}")
                if nxt and not (k + 1 - 6 == ai):
                    A(nxt.pop(0))
        for r in nxt:
            A(r)
        if k + 5 <= 10:
            issue_h(k + 5)
        if k == cfg.get("apoll_k", 6):
            if single:
                A(f"""
v_and_b32 v{vPo}, 31, v0
v_mul_u32_u24 v{vPo}, {FS}, v{vPo}
s_mul_i32 s{sT1}, s{sDB}, {32*FS}
s_add_u32 s{sT1}, s{sT1}, {FA_OFF - FL_OFF}
""")
                A.vmem(f"buffer_load_dword v{vPt}, v{vPo}, s[{SRD_F}:{SRD_F+3}], s{sT1} offen sc1", "apoll")
        if k == cfg.get("aload_k", 7):
            if single:
                poll(A, SRD_F, vPo, 32, sT1, vPt, sTOK, "apoll")
            for dt in range(4):
                for q in range(2):
                    A(f"s_add_u32 s{sSO}, s70, {(8*dt + q)*8192}")
                    A.vmem(f"buffer_load_dword v{ar(5,0) + dt*2 + q}, v{vAo}, s[{SRD_AP}:{SRD_AP+3}], s{sSO} offen{sc}", "a")
    AV = ar(5, 0)
    A(f"""
s_barrier
v_lshlrev_b32 v{vWo}, 4, v0
""")
    for t in range(4):
        lab = A.label("RED")
        A(f"""
s_cmp_eq_u32 s{sWAVE}, {t}
s_cbranch_scc1 {lab}
s_sub_u32 s{sT0}, s{sWAVE}, {t+1}
s_and_b32 s{sT0}, s{sT0}, 3
s_add_u32 s{sT0}, s{sT0}, {3*t}
s_lshl_b32 s{sT0}, s{sT0}, 12
v_add_u32 v{vT}, s{sT0}, v{vWo}
""")
        if t == 0:
            A("s_nop 4")
        for dt in range(4):
            A(f"ds_write_b128 v{vT}, v[{acc(t,dt)}:{acc(t,dt)+3}] offset:{dt*1024}")
        A(f"{lab}:")
    OWN = HR
    endl = A.label("OWN")
    labs = [A.label("OWN") for _ in range(4)]
    for t in range(4):
        if t < 3:
            A(f"s_cmp_lg_u32 s{sWAVE}, {t}\ns_cbranch_scc1 {labs[t]}")
        for r in range(16):
            A(f"v_mov_b32 v{OWN+r}, v{acc(t,0)+r}")
        if t < 3:
            A(f"s_branch {endl}\n{labs[t]}:")
    A(f"{endl}:")
    A.wait_vm(lambda t: t in ("a", "g"))
    GA = AR
    A(f"""
v_sub_f32 v{vPo}, 1.0, v{vG}
v_cvt_pk_bf16_f32 v{vPo}, v{vPo}, v{vPo}
v_and_b32 v{vPo}, 0xffff0000, v{vPo}
""")
    for dt in range(4):
        for q in range(2):
            a = AV + dt * 2 + q
            d = GA + dt * 4 + q * 2
            A(f"v_lshlrev_b32 v{d}, 16, v{a}\nv_and_b32 v{d+1}, 0xffff0000, v{a}")
    for r in range(16):
        A(f"v_mul_f32 v{GA+r}, v{vG}, v{GA+r}")
    A(f"""
s_mul_i32 s{sT0}, s{sWAVE}, 12288
v_add_u32 v{vT}, s{sT0}, v{vWo}
s_waitcnt lgkmcnt(0)
s_barrier
""")
    RB = HR + 16
    for j in range(3):
        for dt in range(4):
            r = RB + j * 16 + dt * 4
            A(f"ds_read_b128 v[{r}:{r+3}], v{vT} offset:{j*4096 + dt*1024}")
    srd(A, SRD_OUT, f"s{sOUT}", f"s{sOUT+1}", None, "0x200000")
    A(f"""
v_and_b32 v12, 15, v0
v_lshlrev_b32 v12, 10, v12
v_bfe_u32 v13, v0, 4, 1
v_lshl_add_u32 v12, v13, 5, v12
v_lshrrev_b32 v13, 5, v0
v_lshl_add_u32 v12, v13, 4, v12
s_lshl_b32 s{sT0}, s{sLB}, 16
s_lshl_b32 s{sT1}, s{sWAVE}, 14
s_add_u32 s{sT0}, s{sT0}, s{sT1}
s_lshl_b32 s{sT1}, s{sDB}, 7
s_add_u32 s{sT0}, s{sT0}, s{sT1}
""")
    for j in range(3):
        A(f"s_waitcnt lgkmcnt({8 - 4*j})")
        for r in range(0, 16, 2):
            A(f"v_pk_add_f32 v[{OWN+r}:{OWN+r+1}], v[{OWN+r}:{OWN+r+1}], v[{RB+j*16+r}:{RB+j*16+r+1}]")
    A(f"v_mov_b32 v{vPt}, v{vPo}")
    for r in range(0, 16, 2):
        A(f"v_pk_fma_f32 v[{OWN+r}:{OWN+r+1}], v[{OWN+r}:{OWN+r+1}], v[{vPo}:{vPo+1}], v[{GA+r}:{GA+r+1}]")
    PK = AR + 16
    for dt in range(4):
        A(f"v_cvt_pk_bf16_f32 v{PK+dt*2}, v{OWN+dt*4}, v{OWN+dt*4+1}")
        A(f"v_cvt_pk_bf16_f32 v{PK+dt*2+1}, v{OWN+dt*4+2}, v{OWN+dt*4+3}")
    A("s_nop 1")
    for pr in range(2):
        b = PK + pr * 4
        A(f"v_permlane16_swap_b32 v{b}, v{b+2}\nv_permlane16_swap_b32 v{b+1}, v{b+3}")
    A("s_nop 1")
    for pr in range(2):
        b = PK + pr * 4
        A.vmem(f"buffer_store_dwordx4 v[{b}:{b+3}], v12, s[{SRD_OUT}:{SRD_OUT+3}], s{sT0} offen offset:{pr*64}", "out")
```

```python
from dsl import *
from ffn import UT_OFF, AP_OFF, FL_OFF, FU_OFF, FH_OFF, FA_OFF, SPIN, sTOK, sE
import ffn

TABS = 57 * 544
COP = 2 * TABS
CPS = 4160
UB = [0, 4608]
PB = 16384
sXp, sAre, sAim, sBre, sBim, sCre, sCim, sLd, sDs, sWS = 4, 6, 8, 10, 12, 14, 16, 18, 20, 22
SX, SUT, SAP, SF = 24, 28, 32, 36
sWAVE, sCH, sWA, sDSK = 40, 41, 42, 43
sT0, sT1, sT2, sT3 = 58, 59, 60, 61
LOG2E = "0x3fb8aa3b"

def cmul(A, d, a, b, t=52):
    A(f"v_pk_mul_f32 v[{t}:{t+1}], v[{a}:{a+1}], v[{b}:{b+1}] op_sel:[0,0] op_sel_hi:[0,1]")
    A(f"v_pk_fma_f32 v[{d}:{d+1}], v[{a}:{a+1}], v[{b}:{b+1}], v[{t}:{t+1}] op_sel:[1,1,0] op_sel_hi:[1,0,1] neg_lo:[0,1,0]")

def flag_store(A, soff_expr_lines, cfg):
    A(soff_expr_lines)
    A(f"""
v_mov_b32 v254, s{sTOK}
v_mov_b32 v255, 0
s_mov_b64 exec, 1
buffer_store_dword v254, v255, s[{SF}:{SF+3}], s{sT0} offen sc1
s_mov_b64 exec, -1
""")

def ssm(A, cfg, phase0=True, rest=True):
    single = cfg["mode"] == "single"
    FS = cfg.get("fstride", 4)
    sc = " sc1" if single else ""
    A(f"""
s_load_dwordx16 s[4:19], s[0:1], 0
s_load_dwordx2 s[{sDs}:{sDs+1}], s[0:1], 64
s_load_dwordx2 s[{sWS}:{sWS+1}], s[0:1], 120
v_lshrrev_b32 v2, 6, v0
v_and_b32 v1, 63, v0
s_lshl_b32 s{sT0}, s2, 9
v_readfirstlane_b32 s{sWAVE}, v2
v_lshlrev_b32 v10, 1, v0
v_add_u32 v10, s{sT0}, v10
s_lshl_b32 s{sT1}, s2, 2
v_lshrrev_b32 v11, 7, v0
v_lshlrev_b32 v11, 1, v11
v_add_u32 v11, s{sT1}, v11
s_lshr_b32 s{sCH}, s{sWAVE}, 1
s_and_b32 s{sWA}, s{sWAVE}, 1
s_waitcnt lgkmcnt(0)
""")
    if rest:
        for i, p in enumerate([sAre, sAim, sBre, sBim, sCre, sCim]):
            A.vmem(f"global_load_ushort v{2+i}, v10, s[{p}:{p+1}]", "par")
        A.vmem(f"global_load_ushort v8, v11, s[{sLd}:{sLd+1}]", "par")
        A(f"s_load_dword s{sDSK}, s[{sDs}:{sDs+1}], s{sT1}")
    if single:
        A(f"""
s_add_u32 s{sT2}, s{sWS}, {FL_OFF}
s_addc_u32 s{sT3}, s{sWS+1}, 0
s_load_dword s{sE}, s[{sT2}:{sT2+1}], 0
""")
        srd(A, SF, f"s{sWS}", f"s{sWS+1}", FL_OFF, "0x100000")
    srd(A, SUT, f"s{sWS}", f"s{sWS+1}", UT_OFF, "0x200000")
    if phase0:
        srd(A, SX, f"s{sXp}", f"s{sXp+1}", None, "0x200000")
        A(f"""
v_lshrrev_b32 v60, 2, v1
v_lshlrev_b32 v60, 10, v60
v_and_b32 v61, 3, v1
v_lshl_add_u32 v60, v61, 4, v60
s_and_b32 s44, s2, 15
s_lshl_b32 s44, s44, 7
s_lshl_b32 s45, s{sWAVE}, 5
s_add_u32 s44, s44, s45
s_lshl_b32 s45, s44, 10
s_lshr_b32 s46, s2, 4
s_lshl_b32 s47, s46, 6
s_add_u32 s45, s45, s47
s_lshl_b32 s47, s{sWAVE}, 11
s_add_u32 s47, s47, {COP}
s_mov_b32 m0, s47
s_add_u32 s48, s45, 16384
""")
        A.vmem(f"buffer_load_dwordx4 v60, s[{SX}:{SX+3}], s45 offen lds", "xt")
        A("s_add_u32 m0, s47, 1024\ns_nop 0")
        A.vmem(f"buffer_load_dwordx4 v60, s[{SX}:{SX+3}], s48 offen lds", "xt")
        A(f"""
v_lshrrev_b32 v61, 4, v1
v_bfe_u32 v62, v1, 2, 2
v_lshl_add_u32 v62, v61, 3, v62
v_lshlrev_b32 v62, 6, v62
v_and_b32 v63, 3, v1
v_lshl_add_u32 v62, v63, 3, v62
v_add_u32 v62, s47, v62
v_and_b32 v63, 15, v1
v_lshlrev_b32 v63, 12, v63
v_lshl_add_u32 v63, v61, 4, v63
s_lshl_b32 s46, s46, 17
s_lshl_b32 s44, s44, 1
s_add_u32 s46, s46, s44
s_add_u32 s49, s46, 0x10000
""")
    def transpose_tail():
        A.wait_vm("xt")
        for hh in range(2):
            for rr in range(2):
                r = 64 + hh * 4 + rr * 2
                A(f"ds_read_b64_tr_b16 v[{r}:{r+1}], v62 offset:{rr*256 + hh*32}")
        A("s_waitcnt lgkmcnt(0)")
        A.vmem(f"buffer_store_dwordx4 v[64:67], v63, s[{SUT}:{SUT+3}], s46 offen{sc}", "ut")
        A.vmem(f"buffer_store_dwordx4 v[68:71], v63, s[{SUT}:{SUT+3}], s49 offen{sc}", "ut")
    if not rest:
        transpose_tail()
        return
    if single:
        A(f"""
s_waitcnt lgkmcnt(0)
s_mul_i32 s{sTOK}, s{sE}, 0x9E3779B1
s_add_u32 s{sTOK}, s{sTOK}, 0x7F4A7C15
""")
    A.wait_vm("par")
    P = {k: 14 + 2 * k for k in range(1, 8)}
    Q = {k: 28 + 2 * k for k in range(1, 9)}
    W8, C0, C1, T, R = 46, 48, 50, 52, 54
    vTab = 10
    for i in range(2, 9):
        A(f"v_lshlrev_b32 v{i}, 16, v{i}")
    A(f"""
v_mul_f32 v12, {LOG2E}, v8
v_fma_f32 v13, v8, s0, -v12
""".replace("s0", "v56") if False else f"""
v_mov_b32 v56, {LOG2E}
v_mul_f32 v12, v56, v8
v_fma_f32 v13, v8, v56, -v12
v_mov_b32 v57, 0x32a57060
v_fma_f32 v13, v8, v57, v13
v_exp_f32 v12, v12
v_mul_f32 v13, 0x3f317218, v13
s_nop 0
v_fma_f32 v12, v12, v13, v12
v_cvt_pk_bf16_f32 v12, v12, v12
v_and_b32 v12, 0xffff0000, v12
v_mul_f32 v2, v12, v2
v_mul_f32 v3, v12, v3
v_mul_f32 v4, v12, v4
v_mul_f32 v5, v12, v5
v_mul_f32 v2, v56, v2
v_mul_f32 v3, 0.15915494, v3
v_lshrrev_b32 v{vTab}, 7, v0
v_mul_u32_u24 v{vTab}, {TABS}, v{vTab}
v_and_b32 v11, 0x7f, v0
v_lshl_add_u32 v{vTab}, v11, 2, v{vTab}
""")
    cmul(A, C0, 6, 4)
    def wpow(d, lam):
        A(f"""
v_mul_f32 v12, {float(lam)}, v2
v_mul_f32 v13, {float(lam)}, v3
v_exp_f32 v12, v12
v_fract_f32 v13, v13
v_cos_f32 v14, v13
v_sin_f32 v15, v13
s_nop 0
v_mul_f32 v{d}, v12, v14
v_mul_f32 v{d+1}, v12, v15
""".replace("v_mul_f32 v12, 128.0, v2", "v_mul_f32 v12, 0x43000000, v2").replace("v_mul_f32 v13, 128.0, v3", "v_mul_f32 v13, 0x43000000, v3")
           .replace("v_mul_f32 v12, 8.0, v2", "v_mul_f32 v12, 0x41000000, v2").replace("v_mul_f32 v13, 8.0, v3", "v_mul_f32 v13, 0x41000000, v3"))
    pk = [56, 57, 58, 59]
    st = {"i": 0}
    def put(row, src, neg=False):
        r = pk[st["i"] % 4]; st["i"] += 1
        n = "-" if neg else ""
        A(f"v_cvt_pk_bf16_f32 v{r}, v{src}, {n}v{src+1}")
        A(f"ds_write_b32 v{vTab}, v{r} offset:{row*544}")
    wpow(P[1], 1); wpow(W8, 8); wpow(Q[1], 128)
    LO, T1, T2, T3 = 0, 17, 33, 49
    A(f"v_mov_b32 v12, 0x3f80\nds_write_b32 v{vTab}, v12 offset:{(T2+8)*544}")
    lo = {"j": 0, "cur": C0}
    def lo_step():
        j = lo["j"]
        if j > 16: return
        put(LO + j, lo["cur"], neg=True)
        if j < 16:
            nxt = C1 if lo["cur"] == C0 else C0
            cmul(A, nxt, lo["cur"], W8, t=R)
            lo["cur"] = nxt
        lo["j"] += 1
    lo_step()
    cmul(A, P[2], P[1], P[1]); put(T2 + 8 + 1, P[1]); lo_step()
    cmul(A, P[3], P[2], P[1]); put(T2 + 8 + 2, P[2]); lo_step()
    cmul(A, P[4], P[2], P[2]); put(T2 + 8 + 3, P[3]); lo_step()
    cmul(A, P[5], P[4], P[1]); put(T3 + 0, P[4])
    cmul(A, P[6], P[3], P[3]); put(T3 + 1, P[5]); lo_step()
    cmul(A, P[7], P[4], P[3]); put(T3 + 2, P[6])
    cmul(A, Q[2], Q[1], Q[1]); put(T3 + 3, P[7]); lo_step()
    if phase0:
        transpose_tail()
    S = 60 if not phase0 else 12
    S = 12
    put(T2 + 12, Q[1])
    for r in range(1, 4):
        cmul(A, S, Q[1], P[r]); put(T2 + 12 + r, S)
    lo_step()
    for r in range(4):
        cmul(A, S, Q[1], P[4 + r]); put(T3 + 4 + r, S)
    lo_step()
    cmul(A, Q[3], Q[2], Q[1]); put(T2 + 0, Q[2])
    for r in range(1, 4):
        cmul(A, S, Q[2], P[2 * r]); put(T2 + r, S)
    lo_step()
    cmul(A, Q[4], Q[2], Q[2]); put(T2 + 4, Q[3])
    for r in range(1, 4):
        cmul(A, S, Q[3], P[2 * r]); put(T2 + 4 + r, S)
    lo_step()
    if single and phase0:
        A.wait_vm("ut")
        flag_store(A, f"""
s_lshl_b32 s{sT0}, s2, 2
s_add_u32 s{sT0}, s{sT0}, s{sWAVE}
s_mul_i32 s{sT0}, s{sT0}, {FS}
s_add_u32 s{sT0}, s{sT0}, {FU_OFF - FL_OFF}""", cfg)
    cmul(A, Q[5], Q[4], Q[1]); put(T1 + 2, Q[4])
    cmul(A, Q[6], Q[3], Q[3]); put(T1 + 4 + 2, Q[5]); lo_step()
    cmul(A, Q[7], Q[4], Q[3]); put(T1 + 8 + 2, Q[6])
    cmul(A, Q[8], Q[4], Q[4]); put(T1 + 12 + 2, Q[7]); lo_step()
    for g in range(4):
        cmul(A, S, Q[4 + g], P[4]); put(T1 + 4 * g + 3, S)
    lo_step()
    put(T1 + 0, Q[8])
    for g in range(1, 4):
        cmul(A, S, Q[8], Q[g]); put(T1 + 4 * g + 0, S)
    lo_step(); lo_step()
    for g in range(4):
        cmul(A, S, Q[8], Q[4 + g]); put(T1 + 4 * g + 1, S)
        lo_step()
    while lo["j"] <= 16:
        lo_step()
    U0, U1 = 72, 76
    if single:
        A(f"""
v_mul_u32_u24 v12, {FS}, v1
s_lshr_b32 s44, s2, 4
s_mul_i32 s44, s44, {64*FS}
s_add_u32 s44, s44, {FU_OFF - FL_OFF}
""")
        A.vmem(f"buffer_load_dword v13, v12, s[{SF}:{SF+3}], s44 offen sc1", "upoll")
        save = (ffn.sT2, ffn.sT3)
        ffn.poll(A, SF, 12, 64, 44, 13, sTOK, "upoll")
    A(f"""
v_lshlrev_b32 v12, 4, v0
s_lshl_b32 s44, s2, 13
s_add_u32 s45, s44, 4096
""")
    A.vmem(f"buffer_load_dwordx4 v[{U0}:{U0+3}], v12, s[{SUT}:{SUT+3}], s44 offen{sc}", "u")
    A.vmem(f"buffer_load_dwordx4 v[{U1}:{U1+3}], v12, s[{SUT}:{SUT+3}], s45 offen{sc}", "u")
    vB, vA, vA3 = 12, 13, 14
    A(f"""
v_and_b32 v15, 15, v1
v_lshrrev_b32 v16, 4, v1
v_mul_u32_u24 v{vB}, 544, v15
v_lshl_add_u32 v{vB}, v16, 4, v{vB}
s_mul_i32 s44, s{sCH}, {TABS}
v_add_u32 v{vB}, s44, v{vB}
s_mul_i32 s45, s{sWA}, {16*544}
s_add_u32 s45, s45, {17*544}
v_add_u32 v{vA}, s45, v{vB}
v_and_b32 v15, 7, v15
v_mul_u32_u24 v{vA3}, 544, v15
v_lshl_add_u32 v{vA3}, v16, 4, v{vA3}
s_add_u32 s44, s44, {49*544}
v_add_u32 v{vA3}, s44, v{vA3}
s_waitcnt lgkmcnt(0)
s_barrier
""")
    KF = 80
    DX, DXP, DY = 128, 132, 136
    def kreads(s):
        b = KF + (s % 3) * 16
        A(f"ds_read_b128 v[{b}:{b+3}], v{vA} offset:{s*64}")
        A(f"ds_read_b128 v[{b+4}:{b+7}], v{vB} offset:{s*64}")
        A(f"ds_read_b128 v[{b+8}:{b+11}], v{vB} offset:{544 + s*64}")
        A(f"ds_read_b128 v[{b+12}:{b+15}], v{vA3} offset:{s*64}")
    kreads(0); kreads(1)
    for s in range(8):
        if s + 2 < 8:
            kreads(s + 2)
            A("s_waitcnt lgkmcnt(8)")
        elif s == 6:
            A("s_waitcnt lgkmcnt(4)")
        else:
            A("s_waitcnt lgkmcnt(0)\ns_barrier")
        b = KF + (s % 3) * 16
        z = lambda r: "0" if s == 0 else f"v[{r}:{r+3}]"
        A(f"v_mfma_f32_16x16x32_bf16 v[{DX}:{DX+3}], v[{b}:{b+3}], v[{b+4}:{b+7}], {z(DX)}")
        A(f"v_mfma_f32_16x16x32_bf16 v[{DXP}:{DXP+3}], v[{b}:{b+3}], v[{b+8}:{b+11}], {z(DXP)}")
        A(f"v_mfma_f32_16x16x32_bf16 v[{DY}:{DY+3}], v[{b+12}:{b+15}], v[{b+4}:{b+7}], {z(DY)}")
    A.wait_vm("u")
    A(f"""
v_lshlrev_b32 v15, 4, v0
v_and_b32 v16, 31, v0
v_lshlrev_b32 v16, 4, v16
v_mov_b32 v20, 0
v_mov_b32 v21, 0
v_mov_b32 v22, 0
v_mov_b32 v23, 0
ds_write_b128 v15, v[{U0}:{U0+3}] offset:{UB[0]+512}
ds_write_b128 v15, v[{U1}:{U1+3}] offset:{UB[1]+512}
ds_write_b128 v16, v[20:23] offset:{UB[0]}
ds_write_b128 v16, v[20:23] offset:{UB[1]}
s_mul_i32 s44, s{sCH}, {2*CPS}
s_add_u32 s44, s44, {COP + 4112}
""")
    CH = 140
    cv = lambda d, lo_, hi_: A(f"v_cvt_pk_bf16_f32 v{d}, v{lo_}, v{hi_}")
    labB, labE = A.label("KB"), A.label("KE")
    A(f"""
s_cmp_eq_u32 s{sWA}, 1
s_cbranch_scc1 {labB}
s_sub_u32 s44, s44, {16*192}
v_lshlrev_b32 v17, 4, v1
v_sub_u32 v17, s44, v17
v_and_b32 v18, 1, v1
v_cmp_eq_u32 vcc, 0, v18
s_nop 1
""")
    for k, off in ((0, 1024), (1, 0)):
        a, b = DX + k, DXP + k
        c = CH + 8 * k
        A(f"v_cndmask_b32 v18, v{b}, v{a}, vcc")
        cv(c, b, b); cv(c + 1, b, b); cv(c + 2, 18, a); cv(c + 3, a, a)
        cv(c + 4, b, b); cv(c + 5, b, b); cv(c + 6, b, 18); cv(c + 7, a, a)
        A(f"ds_write_b128 v17, v[{c}:{c+3}] offset:{off}")
        A(f"ds_write_b128 v17, v[{c+4}:{c+7}] offset:{off + CPS}")
    s_, q_, p_ = DX + 2, DX + 3, DXP + 2
    c = CH + 16
    cv(c, p_, p_); cv(c + 1, p_, q_); cv(c + 2, q_, q_); cv(c + 3, s_, s_)
    cv(c + 4, p_, p_); cv(c + 5, p_, p_); cv(c + 6, q_, q_); cv(c + 7, q_, s_)
    A(f"ds_write_b128 v17, v[{c}:{c+3}] offset:2048")
    A(f"ds_write_b128 v17, v[{c+4}:{c+7}] offset:{2048 + CPS}")
    A(f"s_branch {labE}\n{labB}:")
    A(f"""
v_xor_b32 v17, 32, v1
v_lshlrev_b32 v17, 4, v17
v_sub_u32 v17, s44, v17
s_mov_b32 exec_hi, 0
""")
    c = CH
    t0, t1, t2, t3, t4 = DXP, DX + 3, DX + 2, DX + 1, DX
    cv(c, t0, t0); cv(c + 1, t1, t2); cv(c + 2, t2, t2); cv(c + 3, t3, t4)
    cv(c + 4, t0, t0); cv(c + 5, t0, t1); cv(c + 6, t2, t2); cv(c + 7, t2, t3)
    A("s_mov_b32 exec_lo, 0\ns_mov_b32 exec_hi, -1")
    D = lambda k: (DX + k) if k < 4 else (DY + k - 4)
    A(f"v_cmp_eq_u32 vcc, 63, v1\ns_nop 1\nv_cndmask_b32 v18, v{DXP+1}, v{DXP}, vcc")
    cv(c, DXP, D(7)); cv(c + 1, D(6), D(5)); cv(c + 2, D(4), D(3)); cv(c + 3, D(2), D(1))
    cv(c + 4, 18, DXP); cv(c + 5, D(7), D(6)); cv(c + 6, D(5), D(4)); cv(c + 7, D(3), D(2))
    A("s_mov_b64 exec, -1")
    A(f"ds_write_b128 v17, v[{c}:{c+3}]")
    A(f"ds_write_b128 v17, v[{c+4}:{c+7}] offset:{CPS}")
    c = CH + 8
    A(f"""
v_cvt_pk_bf16_f32 v{c}, v{DX}, v20
v_mov_b32 v{c+1}, 0
v_mov_b32 v{c+2}, 0
v_mov_b32 v{c+3}, 0
v_cvt_pk_bf16_f32 v{c+4}, v{DX+1}, v{DX}
v_mov_b32 v{c+5}, 0
v_mov_b32 v{c+6}, 0
v_mov_b32 v{c+7}, 0
v_mov_b32 v19, s44
s_mov_b32 exec_lo, 0
s_mov_b32 exec_hi, 1
ds_write_b128 v19, v[{c}:{c+3}] offset:16
ds_write_b128 v19, v[{c+4}:{c+7}] offset:{16 + CPS}
ds_write_b128 v19, v[20:23] offset:32
ds_write_b128 v19, v[20:23] offset:{32 + CPS}
s_mov_b64 exec, -1
{labE}:
""")
    F, G, ACC = 80, 144, 208
    vF, vU = 240, 244
    A(f"""
v_and_b32 v15, 15, v1
v_lshrrev_b32 v16, 4, v1
v_and_b32 v18, 1, v15
v_mul_u32_u24 v19, {CPS + 2}, v18
v_lshlrev_b32 v15, 1, v15
v_sub_u32 v19, v19, v15
v_lshl_add_u32 v19, v16, 4, v19
s_mul_i32 s44, s{sCH}, {2*CPS}
s_lshl_b32 s45, s{sWA}, 8
s_sub_u32 s44, s44, s45
s_add_u32 s44, s44, {COP + 4096 - 192 - 512}
v_add_u32 v{vF}, s44, v19
v_subrev_u32 v{vF+1}, 1024, v{vF}
v_subrev_u32 v{vF+2}, 2048, v{vF}
v_subrev_u32 v{vF+3}, 3072, v{vF}
v_lshlrev_b32 v15, 4, v15
v_lshl_add_u32 v15, v16, 4, v15
s_mul_i32 s44, s{sCH}, {UB[1]}
s_xor_b32 s45, s{sWA}, 1
s_lshl_b32 s45, s45, 8
s_add_u32 s44, s44, s45
s_add_u32 s44, s44, 32
v_add_u32 v{vU}, s44, v15
s_waitcnt lgkmcnt(0)
s_barrier
""")
    if cfg.get("kdbg"):
        srd(A, SAP, f"s{sWS}", f"s{sWS+1}", 0xB00000, "0x1000000")
        lab = A.label("KD")
        A(f"s_mul_i32 s44, s2, {4*4224}\nv_lshlrev_b32 v15, 4, v0\nv_add_u32 v24, {COP+64}, v15")
        for chh in range(2):
            for cc in range(2):
                A(f"ds_read_b128 v[20:23], v24 offset:{chh*2*CPS + cc*CPS}")
                A(f"s_waitcnt lgkmcnt(0)\ns_add_u32 s45, s44, {(chh*2+cc)*4224}")
                A(f"buffer_store_dwordx4 v[20:23], v15, s[{SAP}:{SAP+3}], s45 offen")
                A("s_waitcnt vmcnt(0)")
        A.vm = []
    def creads(rr):
        b = rr & 1
        out = []
        for m in range(8):
            r = G + b * 32 + m * 4
            out.append(f"ds_read_b128 v[{r}:{r+3}], v{vU} offset:{192 - 64*rr + 512*m}")
            sp = m
            r = F + b * 32 + sp * 4
            o = 128 * (1 - (sp & 1)) + 16 * (3 - rr)
            out.append(f"ds_read2_b32 v[{r}:{r+1}], v{vF + (sp >> 1)} offset0:{o} offset1:{o+1}")
            out.append(f"ds_read2_b32 v[{r+2}:{r+3}], v{vF + (sp >> 1)} offset0:{o+2} offset1:{o+3}")
        return out
    for r in creads(0):
        A(r)
    for rr in range(4):
        A("s_waitcnt lgkmcnt(0)")
        nxt = creads(rr + 1) if rr < 3 else []
        b = rr & 1
        for sp in range(8):
            for t in range(sp, 8):
                m = t - sp
                c = "0" if (rr == 0 and sp == 0) else f"v[{ACC+4*t}:{ACC+4*t+3}]"
                A(f"v_mfma_f32_16x16x32_bf16 v[{ACC+4*t}:{ACC+4*t+3}], v[{F+b*32+sp*4}:{F+b*32+sp*4+3}], v[{G+b*32+m*4}:{G+b*32+m*4+3}], {c}")
                if nxt:
                    A(nxt.pop(0))
        assert not nxt
    A(f"""
v_lshlrev_b32 v15, 4, v1
s_lshl_b32 s44, s{sWAVE}, 13
s_add_u32 s44, s44, {PB}
v_add_u32 v16, s44, v15
s_nop 3
""")
    for t in range(8):
        A(f"ds_write_b128 v16, v[{ACC+4*t}:{ACC+4*t+3}] offset:{t*1024}")
    A(f"""
s_lshl_b32 s44, s{sWAVE}, 11
s_add_u32 s45, s44, {PB}
v_add_u32 v16, s45, v15
v_and_b32 v17, 15, v1
v_lshrrev_b32 v18, 4, v1
v_lshlrev_b32 v17, 5, v17
v_lshl_add_u32 v17, v18, 3, v17
v_lshlrev_b32 v19, 1, v17
s_lshl_b32 s45, s{sWAVE}, 10
v_add_u32 v17, s45, v17
s_lshl_b32 s46, s2, 13
s_add_u32 s46, s46, s44
s_lshl_b32 s47, s{sDSK}, 16
s_and_b32 s48, s{sDSK}, 0xffff0000
s_waitcnt lgkmcnt(0)
s_barrier
""")
    srd(A, SAP, f"s{sWS}", f"s{sWS+1}", AP_OFF, "0x200000")
    Y = 80
    for tt in range(2):
        for w in range(4):
            r = Y + tt * 16 + w * 4
            A(f"ds_read_b128 v[{r}:{r+3}], v16 offset:{w*8192 + tt*1024}")
        for chh in range(2):
            r = 120 + tt * 4 + chh * 2
            A(f"ds_read_b64 v[{r}:{r+1}], v17 offset:{UB[chh] + 512 + tt*512}")
    for tt in range(2):
        A(f"s_waitcnt lgkmcnt({6 if tt == 0 else 0})")
        o = 128 + tt * 4
        for chh in range(2):
            y = Y + tt * 16 + chh * 8
            A(f"v_pk_add_f32 v[{y}:{y+1}], v[{y}:{y+1}], v[{y+4}:{y+5}]")
            A(f"v_pk_add_f32 v[{y+2}:{y+3}], v[{y+2}:{y+3}], v[{y+6}:{y+7}]")
            u = 120 + tt * 4 + chh * 2
            sD = 47 + chh
            for e in range(4):
                src = u + (e >> 1)
                if e & 1:
                    A(f"v_and_b32 v20, 0xffff0000, v{src}")
                else:
                    A(f"v_lshlrev_b32 v20, 16, v{src}")
                A(f"v_fma_f32 v{y+e}, v20, s{sD}, v{y+e}")
        for e in range(4):
            A(f"v_cvt_pk_bf16_f32 v{o+e}, v{Y+tt*16+e}, v{Y+tt*16+8+e}")
        A(f"s_add_u32 s45, s46, {tt*1024}")
        A.vmem(f"buffer_store_dwordx4 v[{o}:{o+3}], v19, s[{SAP}:{SAP+3}], s45 offen{sc}", "ap")
    if single:
        A.wait_vm("ap")
        flag_store(A, f"""
s_lshl_b32 s{sT0}, s2, 2
s_add_u32 s{sT0}, s{sT0}, s{sWAVE}
s_mul_i32 s{sT0}, s{sT0}, {FS}
s_add_u32 s{sT0}, s{sT0}, {FA_OFF - FL_OFF}""", cfg)
        epoch_update(A, cfg)

def epoch_update(A, cfg):
    FS = cfg.get("fstride", 4)
    lab = A.label("EPO")
    A(f"""
s_or_b32 s44, s2, s{sWAVE}
s_cmp_lg_u32 s44, 0
s_cbranch_scc1 {lab}
s_mov_b32 s45, {SPIN}
v_mul_u32_u24 v12, {FS}, v1
""")
    top, ok = A.label("EPT"), A.label("EPK")
    A(f"{top}:")
    n = 0
    for base in (FU_OFF, FH_OFF):
        for k in range(16):
            A(f"s_mov_b32 s46, {base - FL_OFF + k*64*FS}")
            A(f"buffer_load_dword v{16+n}, v12, s[{SF}:{SF+3}], s46 offen sc1")
            n += 1
    A("s_waitcnt vmcnt(0)")
    A(f"v_xor_b32 v15, s{sTOK}, v16")
    for k in range(1, 32):
        A(f"v_xor_b32 v{16+k}, s{sTOK}, v{16+k}\nv_or_b32 v15, v15, v{16+k}")
    A(f"""
v_cmp_ne_u32 vcc, 0, v15
s_cbranch_vccz {ok}
s_sub_u32 s45, s45, 1
s_cmp_lg_u32 s45, 0
s_cbranch_scc1 {top}
{ok}:
v_mov_b32 v12, s{sTOK}
v_mov_b32 v13, 0
s_mov_b64 exec, 1
buffer_store_dword v12, v13, s[{SF}:{SF+3}], 0 offen sc1
s_mov_b64 exec, -1
{lab}:
""")
```

```python
import sys
from dsl import *
import ffn
try:
    import ssm
except ImportError:
    ssm = None
NAME = "gated_mix__ssm_conv_s4__dense_activation_relu__prompt"
HEAD = open("cdna_kernels/" + NAME + ".s.ref").read().split("; Override launch")[0]

def build(cfg):
    out = [HEAD]
    mode = cfg["mode"]
    ks = []
    if mode == "multi":
        names = cfg.get("kernels", ["g1", "tr", "ssm", "g2"])
        for n in names:
            lds = 81920
            out.append(f"; @launch kernel={n}_kernel grid=(256,1,1) block=(256,1,1) lds={lds}\n")
        out.append('.amdgcn_target "amdgcn-amd-amdhsa--gfx950"\n')
        for n in names:
            A = Asm(); A.nlabel = {"g1": 0, "g2": 1000, "ssm": 2000, "tr": 3000}[n]
            end = f"END_{n}"
            A(f"s_cmp_ge_u32 s2, 256\ns_cbranch_scc1 {end}")
            if n == "g1":
                ffn.ffn_prologue(A, cfg); ffn.g1(A, cfg)
            elif n == "g2":
                ffn.ffn_prologue(A, cfg); A("s_waitcnt lgkmcnt(0)"); ffn.g2(A, cfg)
            elif n == "tr":
                ssm.ssm(A, cfg, phase0=True, rest=False)
            else:
                ssm.ssm(A, cfg, phase0=False, rest=True)
            A(f"{end}:\ns_endpgm")
            out.append(kernel_header(n + "_kernel") + A.text())
            ks.append(n + "_kernel")
    else:
        out.append("; @launch grid=(512,1,1) block=(256,1,1) lds=81920\n")
        out.append('.amdgcn_target "amdgcn-amd-amdhsa--gfx950"\n')
        A = Asm()
        n = NAME + "_kernel"
        A("s_cmp_ge_u32 s2, 512\ns_cbranch_scc1 END_ALL\ns_cmp_ge_u32 s2, 256\ns_cbranch_scc1 SSM_ROLE")
        ffn.ffn_prologue(A, cfg)
        ffn.token(A, cfg)
        ffn.g1(A, cfg); ffn.g2(A, cfg)
        A("s_endpgm\nSSM_ROLE:\ns_sub_u32 s2, s2, 256")
        A.vm = []
        ssm.ssm(A, cfg)
        A("END_ALL:\ns_endpgm")
        out.append(kernel_header(n) + A.text())
        ks.append(n)
    for k in ks:
        out.append(kernel_desc(k))
    return "".join(out)

if __name__ == "__main__":
    cfg = {"mode": sys.argv[1]}
    for kv in sys.argv[3:]:
        k, v = kv.split("=")
        cfg[k] = v.split(",") if k == "kernels" else (int(v) if v.lstrip("-").isdigit() else v)
    open(sys.argv[2], "w").write(build(cfg))
```
